```python
import torch

def _softmax(x, axis=-1):
    return torch.softmax(x, dim=axis)
def _gelu(x):
    return torch.nn.functional.gelu(x, approximate="tanh")
def _silu(x):
    return torch.nn.functional.silu(x)
def _sigmoid(x):
    return torch.sigmoid(x)
def _layernorm(x, axis=-1, eps=1e-5):
    m = x.mean(dim=axis, keepdim=True)
    v = x.var(dim=axis, keepdim=True, unbiased=False)
    return (x - m) / torch.sqrt(v + eps)
def _scatter_add(tgt, idx, src, axis=0):
    return tgt.clone().index_add_(axis, idx, src)
def _segment_sum(src, seg, n):
    out = torch.zeros((n,) + src.shape[1:], dtype=src.dtype)
    return out.index_add_(0, seg, src)
def _pad(x, pw):
    flat = tuple(v for pair in reversed(pw) for v in pair)
    return torch.nn.functional.pad(x, flat)

kernel_name = 'concat_heads__mha_block_cached__gqa_block_cached__near_ridge'

def setup_inputs():

    _w = (lambda a: (lambda t: t.to(torch.bfloat16) if t.is_floating_point() else t)(torch.as_tensor(a)))
    def _A_setup():
        B, Sq, D = 8, 240, 1024
        H, Sk, Dh = 32, 1024, 128
        return {
            "x": _w((lambda *s: torch.randn(*s, dtype=torch.bfloat16) * 0.8)(B, Sq, D)),
            "k_cache": _w((lambda *s: torch.randn(*s, dtype=torch.bfloat16) * 0.8)(B, H, Sk, Dh)),
            "v_cache": _w((lambda *s: torch.randn(*s, dtype=torch.bfloat16) * 0.05)(B, H, Sk, Dh)),
            "wq": _w((lambda *s: torch.randn(*s, dtype=torch.bfloat16) * 0.8)(D, H * Dh) * (D ** -0.5)),
            "wo": _w((lambda *s: torch.randn(*s, dtype=torch.bfloat16) * 0.05)(H * Dh, D) * ((H * Dh) ** -0.5)),
        }
    _A_in = _A_setup()

    def _B_setup():
        B, Sq, D = 8, 240, 1024
        Hq, Hkv, Sk, Dh = 32, 32, 1024, 128
        assert Hq % Hkv == 0, (Hq, Hkv)
        return {
            "x": _w((lambda *s: torch.randn(*s, dtype=torch.bfloat16) * 0.8)(B, Sq, D)),
            "k_cache": _w((lambda *s: torch.randn(*s, dtype=torch.bfloat16) * 0.8)(B, Hkv, Sk, Dh)),
            "v_cache": _w((lambda *s: torch.randn(*s, dtype=torch.bfloat16) * 0.05)(B, Hkv, Sk, Dh)),
            "wq": _w((lambda *s: torch.randn(*s, dtype=torch.bfloat16) * 0.8)(D, Hq * Dh) * (D ** -0.5)),
            "wo": _w((lambda *s: torch.randn(*s, dtype=torch.bfloat16) * 0.05)(Hq * Dh, D) * ((Hq * Dh) ** -0.5)),
        }
    _B_in = _B_setup()

    return {
        "A_x": _A_in["x"],
        "A_k_cache": _A_in["k_cache"],
        "A_v_cache": _A_in["v_cache"],
        "A_wq": _A_in["wq"],
        "A_wo": _A_in["wo"],
        "B_x": _B_in["x"],
        "B_k_cache": _B_in["k_cache"],
        "B_v_cache": _B_in["v_cache"],
        "B_wq": _B_in["wq"],
        "B_wo": _B_in["wo"],
    }

def reference(A_x, A_k_cache, A_v_cache, A_wq, A_wo, B_x, B_k_cache, B_v_cache, B_wq, B_wo):
    def _A_ref(x, k_cache, v_cache, wq, wo):
        B, Sq, D = x.shape
        H, Dh = 32, 128
        q = (lambda x, *d: x.permute(*d))((x @ wq).reshape(B, Sq, H, Dh), 0, 2, 1, 3)
        scores = torch.einsum("bhqd,bhkd->bhqk", q, k_cache) * (Dh ** -0.5)
        p = _softmax(scores, axis=-1)
        o = torch.einsum("bhqk,bhkd->bhqd", p, v_cache)
        return (lambda x, *d: x.permute(*d))(o, 0, 2, 1, 3).reshape(B, Sq, H * Dh) @ wo

    def _B_ref(x, k_cache, v_cache, wq, wo):
        B, Sq, D = x.shape
        Hq, Dh = 32, 128
        Hkv = k_cache.shape[1]
        rep = Hq // Hkv
        q = (lambda x, *d: x.permute(*d))((x @ wq).reshape(B, Sq, Hq, Dh), 0, 2, 1, 3)
        k = (lambda x, n, axis: torch.repeat_interleave(x, n, dim=axis))(k_cache, rep, axis=1)
        v = (lambda x, n, axis: torch.repeat_interleave(x, n, dim=axis))(v_cache, rep, axis=1)
        scores = torch.einsum("bhqd,bhkd->bhqk", q, k) * (Dh ** -0.5)
        p = _softmax(scores, axis=-1)
        o = torch.einsum("bhqk,bhkd->bhqd", p, v)
        return (lambda x, *d: x.permute(*d))(o, 0, 2, 1, 3).reshape(B, Sq, Hq * Dh) @ wo

    a = _A_ref(A_x, A_k_cache, A_v_cache, A_wq, A_wo)
    b = _B_ref(B_x, B_k_cache, B_v_cache, B_wq, B_wo)
    return torch.concatenate([a, b], axis=-1)
```

```python
import re

def regs(f, lo, n=1):
    return [(f, lo + i) for i in range(n)]

def R(f, lo, n=1):
    return f"{f}{lo}" if n == 1 else f"{f}[{lo}:{lo+n-1}]"

class I:
    __slots__ = ("text", "kind", "rd", "wr", "tag", "need", "cost", "grp")
    def __init__(self, text, kind, rd=(), wr=(), tag=None, need=None):
        self.text = text; self.kind = kind
        self.rd = list(rd); self.wr = list(wr)
        self.tag = tag
        self.need = need
        self.grp = None
    def __repr__(self): return self.text

def mfma(d, a, b, c):
    rd = regs(a[0], a[1], 4) + regs(b[0], b[1], 4)
    if c is not None: rd += regs(c[0], c[1], 4)
    cs = "0" if c is None else R(c[0], c[1], 4)
    return I(f"v_mfma_f32_16x16x32_bf16 {R(d[0],d[1],4)}, {R(a[0],a[1],4)}, {R(b[0],b[1],4)}, {cs}", "mfma", rd, regs(d[0], d[1], 4))

def ds_read_b128(d, addr, off, tag=None):
    return I(f"ds_read_b128 {R(d[0],d[1],4)}, v{addr} offset:{off}", "ds", [("v", addr)], regs(d[0], d[1], 4), tag)

def ds_read_tr(d, addr, off, tag=None):
    return I(f"ds_read_b64_tr_b16 {R(d[0],d[1],2)}, v{addr} offset:{off}", "ds", [("v", addr)], regs(d[0], d[1], 2), tag)

def dma(voff, srd, soff, imm, tag):
    o = f" offset:{imm}" if imm else ""
    return I(f"buffer_load_dwordx4 v{voff}, s[{srd}:{srd+3}], s{soff} offen{o} lds", "dma", [("v", voff), ("s", soff), ("m0", 0)] + regs("s", srd, 4), [], tag)

def vload(d, n, voff, srd, soff, imm=0, tag=None, flags=""):
    o = f" offset:{imm}" if imm else ""
    nm = {1: "dword", 2: "dwordx2", 4: "dwordx4"}[n]
    so = f"s{soff}" if isinstance(soff, int) else soff
    rd = [("v", voff)] + regs("s", srd, 4) + ([("s", soff)] if isinstance(soff, int) else [])
    return I(f"buffer_load_{nm} {R(d[0],d[1],n)}, v{voff}, s[{srd}:{srd+3}], {so} offen{o}{flags}", "vmem", rd, regs(d[0], d[1], n), tag)

def vstore(d, n, voff, srd, soff, imm=0, tag=None, flags=""):
    o = f" offset:{imm}" if imm else ""
    nm = {1: "dword", 2: "dwordx2", 4: "dwordx4"}[n]
    so = f"s{soff}" if isinstance(soff, int) else soff
    rd = [("v", voff)] + regs("s", srd, 4) + regs(d[0], d[1], n) + ([("s", soff)] if isinstance(soff, int) else [])
    return I(f"buffer_store_{nm} {R(d[0],d[1],n)}, v{voff}, s[{srd}:{srd+3}], {so} offen{o}{flags}", "vstore", rd, [], tag)

def valu(text, rd=(), wr=()): return I(text, "valu", rd, wr)
def trans(text, rd=(), wr=()): return I(text, "trans", rd, wr)
def salu(text, rd=(), wr=()): return I(text, "salu", rd, wr)
def perm(text, rd, wr): return I(text, "perm", rd, wr)
def raw(text): return I(text, "raw")
def label(name): return I(name + ":", "label")
def nop(n): return I(f"s_nop {n}", "nop", tag=n)
def barrier(vm=(), ds=False): return I("s_barrier", "barrier", need=dict(vm=list(vm), ds=ds))
def waitmark(vm=(), ds=False): return I("", "waitmark", need=dict(vm=list(vm), ds=ds))

def v_exp(d, s): return trans(f"v_exp_f32_e32 v{d}, v{s}", [("v", s)], [("v", d)])
def v_add(d, a, b): return valu(f"v_add_f32_e32 v{d}, v{a}, v{b}", [("v", a), ("v", b)], [("v", d)])
def v_cvtpk(d, a, b): return valu(f"v_cvt_pk_bf16_f32 v{d}, v{a}, v{b}", [("v", a), ("v", b)], [("v", d)])
def acc_rd(d, a): return valu(f"v_accvgpr_read_b32 v{d}, a{a}", [("a", a)], [("v", d)])
def acc_wr(a, s): return valu(f"v_accvgpr_write_b32 a{a}, v{s}", [("v", s)], [("a", a)])
def acc_mov(d, s): return valu(f"v_accvgpr_mov_b32 a{d}, a{s}", [("a", s)], [("a", d)])
def s_movm0(val): return salu(f"s_mov_b32 m0, {val}", [], [("m0", 0)])
def s_addi(d, a, imm): return salu(f"s_add_u32 s{d}, s{a}, {imm}", [("s", a)], [("s", d)])

VM_KINDS = ("dma", "vmem", "vstore")

def insert_waits(seq, pre_ds=(), pre_vm=(), hoist=True):
    out = []
    dsq = list(pre_ds); vmq = list(pre_vm)
    ds_done = 0; vm_done = 0
    def last_mfma_pos():
        for k in range(len(out) - 1, -1, -1):
            kd = out[k].kind
            if kd == "mfma": return k
            if kd in ("label", "barrier", "raw", "branch"): return None
        return None
    def emit_wait(ds_n=None, vm_n=None, target_ds=None, target_vm=None):
        nonlocal ds_done, vm_done
        pos = len(out)
        if hoist:
            p = last_mfma_pos()
            if p is not None:
                nds = sum(1 for x in out[p+1:] if x.kind == "ds"); nvm = sum(1 for x in out[p+1:] if x.kind in VM_KINDS)
                ok = True
                if target_ds is not None and target_ds >= len(dsq) - nds: ok = False
                if target_vm is not None and target_vm >= len(vmq) - nvm: ok = False
                if ok:
                    pos = p + 1
                    if target_ds is not None: ds_n = len(dsq) - nds - 1 - target_ds
                    if target_vm is not None: vm_n = len(vmq) - nvm - 1 - target_vm
        parts = []
        if vm_n is not None: parts.append(f"vmcnt({min(vm_n,63)})")
        if ds_n is not None: parts.append(f"lgkmcnt({min(ds_n,15)})")
        out.insert(pos, I("s_waitcnt " + " ".join(parts), "wait"))
        if target_ds is not None: ds_done = max(ds_done, target_ds + 1)
        if target_vm is not None: vm_done = max(vm_done, target_vm + 1)
    for ins in seq:
        tds = None; tvm = None
        touched = set(ins.rd) | set(ins.wr)
        if touched:
            for k in range(len(dsq) - 1, ds_done - 1, -1):
                if set(dsq[k].wr) & touched: tds = k; break
            for k in range(len(vmq) - 1, vm_done - 1, -1):
                if vmq[k].kind == "vmem" and set(vmq[k].wr) & touched: tvm = k; break
        if ins.need:
            for k in range(len(vmq) - 1, vm_done - 1, -1):
                if vmq[k].tag in ins.need["vm"]:
                    tvm = k if tvm is None else max(tvm, k); break
            if ins.need["ds"] and len(dsq) > ds_done:
                tds = len(dsq) - 1
        def extend(q, k):
            if k is None or q[k].grp is None: return k
            g = q[k].grp; last = k; j = k + 1
            while j < len(q) and j - last <= 4:
                if q[j].grp == g: last = j
                j += 1
            return last
        tds = extend(dsq, tds); tvm = extend(vmq, tvm)
        if tds is not None or tvm is not None:
            ds_n = None if tds is None else len(dsq) - 1 - tds
            vm_n = None if tvm is None else len(vmq) - 1 - tvm
            if ins.kind in ("barrier", "waitmark"):
                save = hoist
                emit_wait_nohoist = True
                parts = []
                if vm_n is not None: parts.append(f"vmcnt({min(vm_n,63)})")
                if ds_n is not None: parts.append(f"lgkmcnt({min(ds_n,15)})")
                out.append(I("s_waitcnt " + " ".join(parts), "wait"))
                if tds is not None: ds_done = max(ds_done, tds + 1)
                if tvm is not None: vm_done = max(vm_done, tvm + 1)
            else:
                emit_wait(ds_n, vm_n, tds, tvm)
        if ins.kind != "waitmark": out.append(ins)
        if ins.kind == "ds": dsq.append(ins)
        if ins.kind in VM_KINDS: vmq.append(ins)
    return out, dsq[ds_done:], vmq[vm_done:]

def loop_waits(body):
    pds, pvm = [], []
    prev = None
    for _ in range(6):
        out, eds, evm = insert_waits(body, pds, pvm)
        txt = [x.text for x in out]
        if txt == prev: return out, eds, evm
        prev = txt
        nds = sum(1 for x in body if x.kind == "ds"); nvm = sum(1 for x in body if x.kind in VM_KINDS)
        pds, pvm = eds[-nds:] if nds else [], evm[-max(nvm, 1) * 4:] if nvm else []
    raise RuntimeError("loop waits did not converge")

def states(ins):
    if ins.kind == "nop": return ins.tag + 1
    if ins.kind in ("label", "waitmark"): return 0
    return 1

def check_hazards(seq, name=""):
    errs = []
    n = len(seq)
    VAL = ("valu", "trans", "perm")
    for i, p in enumerate(seq):
        if p.kind not in ("mfma", "valu", "trans", "perm", "salu", "vstore"): continue
        pw = set(p.wr); prd = set(p.rd)
        dist = 0
        for j in range(i + 1, min(n, i + 24)):
            c = seq[j]
            if c.kind == "branch" and c.text.startswith("s_branch"): break
            crd = set(c.rd); cwr = set(c.wr)
            need = 0
            if p.kind == "mfma":
                if c.kind in VAL and (pw & (crd | cwr)): need = 8
                elif c.kind in ("ds", "vmem", "vstore", "dma") and (pw & (crd | cwr)): need = 8
                elif c.kind == "mfma":
                    ab = set(c.rd[:8]); cc = set(c.rd[8:])
                    if pw & ab: need = 8
                    elif pw & cc and cc != pw: need = 6
                pc = set(p.rd[8:])
                if c.kind in VAL and (pc & cwr): need = max(need, 3)
            elif p.kind in VAL:
                pv = {r for r in pw if r[0] in "va"}
                ps = {r for r in pw if r[0] == "s" or r[0] == "vcc"}
                if c.kind == "mfma" and (pv & crd): need = 2
                if c.kind == "perm" and (pv & crd): need = max(need, 2)
                if p.kind == "trans" and c.kind in ("valu", "perm") and (pv & crd): need = max(need, 1)
                if ps and c.kind in ("dma", "vmem", "vstore") and (ps & crd): need = max(need, 5)
                if ps and c.kind in VAL and (ps & crd): need = max(need, 2)
                if "readlane" in c.text or "readfirstlane" in c.text:
                    if pv & crd: need = max(need, 1)
            elif p.kind == "salu":
                if ("m0", 0) in pw and c.kind == "dma": need = 1
            elif p.kind == "vstore":
                data = {r for r in prd if r[0] in "va"}
                if c.kind in VAL and (data & cwr) and "dwordx4" in p.text: need = 2
            if need > dist:
                errs.append(f"{name}: hazard need {need} got {dist}: [{p.text}] -> [{c.text}]")
            dist += states(c)
            if dist >= 12: break
    return errs

def emit(seq):
    out = []
    for x in seq:
        if x.kind == "waitmark" or not x.text: continue
        out.append(x.text if x.kind == "label" else "  " + x.text)
    return "\n".join(out)

def verify_waits(seq, name=""):
    errs = []
    dsq = []; vmq = []
    for ins in seq:
        if ins.kind == "wait":
            m = re.search(r"vmcnt\((\d+)\)", ins.text)
            if m:
                n = int(m.group(1))
                if len(vmq) > n: vmq = vmq[len(vmq) - n:] if n else []
            m = re.search(r"lgkmcnt\((\d+)\)", ins.text)
            if m:
                n = int(m.group(1))
                if len(dsq) > n: dsq = dsq[len(dsq) - n:] if n else []
            continue
        touched = set(ins.rd) | set(ins.wr)
        for o in dsq:
            if set(o.wr) & touched: errs.append(f"{name}: ds not waited: [{o.text}] -> [{ins.text}]")
        for o in vmq:
            if o.kind == "vmem" and set(o.wr) & touched: errs.append(f"{name}: vm not waited: [{o.text}] -> [{ins.text}]")
        if ins.need:
            for o in vmq:
                if o.tag in ins.need["vm"]: errs.append(f"{name}: barrier needs tag {o.tag} still outstanding")
            if ins.need["ds"] and dsq: errs.append(f"{name}: barrier with ds outstanding")
        if ins.kind == "ds": dsq.append(ins)
        if ins.kind in VM_KINDS:
            vmq.append(ins)
    return errs

ORDER = {"wait": 0, "barrier": 0, "waitmark": 0, "salu": 1, "raw": 1, "nop": 1, "branch": 1, "label": 1, "ds": 2, "dma": 3, "vmem": 3, "vstore": 3, "valu": 4, "perm": 4, "trans": 5}
def weave(mfmas, fill, sort=True):
    out = []
    def put(g):
        items = fill.get(g, [])
        if sort: items = sorted(items, key=lambda x: ORDER[x.kind])
        out.extend(items)
    put(-1)
    for g, m in enumerate(mfmas):
        out.append(m); put(g)
    extra = [g for g in fill if g >= len(mfmas) or g < -1]
    assert not extra, f"fill gaps out of range {extra}"
    return out

def mark(n): return I(f"; @{n}", "label", tag=("mark", n))

def build_loop(pro, body, post, name, nmin=1):
    import copy
    def cp(l): return [copy.copy(x) for x in l]
    lin = cp(pro) + [mark("b1")] + cp(body) + [mark("b2")] + cp(body) + [mark("b3")] + cp(body) + [mark("post")] + cp(post)
    out, eds, evm = insert_waits(lin)
    idx = {x.tag[1]: k for k, x in enumerate(out) if x.kind == "label" and isinstance(x.tag, tuple)}
    p = out[:idx["b1"]]; b1 = out[idx["b1"]+1:idx["b2"]]; b2 = out[idx["b2"]+1:idx["b3"]]; b3 = out[idx["b3"]+1:idx["post"]]; q = out[idx["post"]+1:]
    if [x.text for x in b2] != [x.text for x in b3]:
        raise RuntimeError(f"{name}: loop waits not steady")
    errs = []
    for n in (1, 2, 4):
        errs += verify_waits(p + b2 * n + q, f"{name}/x{n}")
    errs += check_hazards(p + b2 + b2 + q, name)
    if errs:
        for e in errs[:40]: print(e)
        raise RuntimeError(f"{name}: {len(errs)} wait/hazard errors")
    return p, b2, q

def build_linear(seq, name):
    out, _, _ = insert_waits(seq)
    errs = verify_waits(out, name) + check_hazards(out, name)
    if errs:
        for e in errs[:40]: print(e)
        raise RuntimeError(f"{name}: {len(errs)} wait/hazard errors")
    return out

def grp(l, g):
    for x in l: x.grp = g
    return l
```

```python
from ir import *
import copy

NAME = "attn_kernel"
WS_O_BLK = 120 * 128 * 1024
CSCALE = 0x3e0293ee
import struct, math
assert abs(struct.unpack("<f", struct.pack("<I", CSCALE))[0] - math.log2(math.e) / math.sqrt(128)) < 1e-7

vLANE16 = 1
aK, aV, aW, aX = 4, 8, 16, 24
dK, dV, dW, dX = 26, 30, 32, 36
T0 = 40
S_ = (64, 80); P_ = (96, 104); L_ = 112
OACC = 128
sX, sW, sK, sV, sO = 8, 12, 16, 20, 24
sWAVE = 28; sB = 29; sWB = 44; sXB = 45; sSOFF = 46; sKV = 47; sOT = 48; sTMP = 50
sC = 40

def setup_text():
    P = []; A = P.append
    A(f".p2align 8\n.globl {NAME}\n.type {NAME},@function\n{NAME}:")
    A("  s_cmp_ge_u32 s2, 256")
    A("  s_cbranch_scc1 L1_end")
    A("  s_and_b32 s3, s2, 7")
    A("  s_lshr_b32 s4, s2, 3")
    A("  s_lshr_b32 s5, s3, 2")
    A("  s_lshr_b32 s6, s3, 1")
    A("  s_and_b32 s6, s6, 1")
    A("  s_lshl_b32 s6, s6, 2")
    A("  s_and_b32 s7, s4, 3")
    A("  s_add_u32 s6, s6, s7")
    A("  s_and_b32 s7, s3, 1")
    A("  s_lshl_b32 s7, s7, 3")
    A("  s_lshr_b32 s4, s4, 2")
    A("  s_add_u32 s7, s7, s4")
    A("  s_mul_i32 s4, s5, 40")
    A("  s_add_u32 s30, s0, s4")
    A("  s_addc_u32 s31, s1, 0")
    A("  s_load_dwordx4 s[32:35], s[30:31], 0")
    A("  s_load_dwordx4 s[36:39], s[30:31], 16")
    A("  s_load_dwordx2 s[42:43], s[0:1], 96")
    A("  v_and_b32 v2, 63, v0")
    A("  v_lshrrev_b32 v3, 6, v0")
    A("  v_and_b32 v40, 15, v2")
    A("  v_lshrrev_b32 v41, 4, v2")
    A(f"  v_readfirstlane_b32 s{sWAVE}, v3")
    A(f"  v_lshlrev_b32 v{vLANE16}, 4, v2")
    A("  v_lshrrev_b32 v43, 2, v40")
    A("  v_and_b32 v42, 1, v41")
    A("  v_lshl_add_u32 v42, v42, 2, v43")
    A("  v_and_b32 v44, 3, v40")
    A("  v_lshlrev_b32 v44, 3, v44")
    for ks in range(4):
        A(f"  v_add_u32 v45, {4*ks}, v41")
        A("  v_xor_b32 v45, v45, v40")
        A("  v_lshlrev_b32 v45, 4, v45")
        A(f"  v_lshl_add_u32 v{aK+ks}, v40, 8, v45")
    A("  v_lshl_add_u32 v45, v41, 2, v43")
    A("  v_lshl_add_u32 v45, v45, 8, v44")
    A("  v_add_u32 v45, 0x10000, v45")
    A("  v_lshl_add_u32 v46, v41, 3, v43")
    A("  v_lshl_add_u32 v46, v46, 8, v44")
    for t in range(8):
        A(f"  v_xor_b32 v47, {t}, v42")
        A(f"  v_lshl_add_u32 v{aV+t}, v47, 5, v45")
        A(f"  v_lshl_add_u32 v{aW+t}, v47, 5, v46")
    A(f"  s_lshl_b32 s3, s{sWAVE}, 13")
    A("  s_add_u32 s3, s3, 0x10000")
    A("  v_lshrrev_b32 v47, 1, v40")
    for ks in range(2):
        A(f"  v_add_u32 v45, {4*ks}, v41")
        A("  v_xor_b32 v45, v45, v47")
        A("  v_lshlrev_b32 v45, 4, v45")
        A("  v_lshl_add_u32 v45, v40, 7, v45")
        A(f"  v_add_u32 v{aX+ks}, s3, v45")
    for j in range(4):
        A(f"  v_add_u32 v45, {4*j}, v41")
        A("  v_xor_b32 v45, v45, v40")
        A("  v_lshlrev_b32 v45, 4, v45")
        A(f"  v_lshl_add_u32 v{dK+j}, v41, 8, v45")
    for p in range(2):
        A(f"  v_add_u32 v45, {4*p}, v41")
        A("  v_lshlrev_b32 v45, 1, v45")
        A("  v_xor_b32 v45, v45, v40")
        A("  v_lshlrev_b32 v45, 4, v45")
        A(f"  v_lshl_add_u32 v{dV+p}, v41, 8, v45")
    for j in range(4):
        A(f"  v_add_u32 v45, {4*(j>>1)}, v41")
        A("  v_lshlrev_b32 v45, 1, v45")
        A("  v_xor_b32 v45, v45, v40")
        A("  v_lshlrev_b32 v45, 4, v45")
        A("  v_lshl_add_u32 v45, v41, 13, v45")
        A(f"  v_add_u32 v{dW+j}, {4*j*8192 - 1024*j}, v45")
    A("  v_lshrrev_b32 v46, 3, v2")
    A("  v_and_b32 v47, 7, v2")
    A("  v_lshrrev_b32 v43, 1, v46")
    for j in range(4):
        A(f"  v_add_u32 v45, {4*(j&1)}, v43")
        A("  v_xor_b32 v45, v45, v47")
        A("  v_lshlrev_b32 v45, 4, v45")
        A("  v_lshl_add_u32 v45, v46, 11, v45")
        A(f"  v_add_u32 v{dX+j}, {8*j*2048 - 1024*j}, v45")
    A("  s_waitcnt lgkmcnt(0)")
    A("  s_mul_i32 s3, s6, 491520")
    A(f"  s_add_u32 s{sX}, s32, s3")
    A(f"  s_addc_u32 s{sX+1}, s33, 0")
    A(f"  s_mov_b32 s{sX+2}, 491520")
    A(f"  s_mov_b32 s{sX+3}, 0x20000")
    A("  s_lshl_b32 s3, s7, 9")
    A(f"  s_add_u32 s{sW}, s38, s3")
    A(f"  s_addc_u32 s{sW+1}, s39, 0")
    A(f"  s_sub_u32 s{sW+2}, 0x800000, s3")
    A(f"  s_mov_b32 s{sW+3}, 0x20000")
    A("  s_lshl_b32 s3, s6, 5")
    A("  s_lshl_b32 s4, s7, 1")
    A("  s_add_u32 s3, s3, s4")
    A("  s_lshl_b32 s3, s3, 18")
    A(f"  s_add_u32 s{sK}, s34, s3")
    A(f"  s_addc_u32 s{sK+1}, s35, 0")
    A(f"  s_mov_b32 s{sK+2}, 0x80000")
    A(f"  s_mov_b32 s{sK+3}, 0x20000")
    A(f"  s_add_u32 s{sV}, s36, s3")
    A(f"  s_addc_u32 s{sV+1}, s37, 0")
    A(f"  s_mov_b32 s{sV+2}, 0x80000")
    A(f"  s_mov_b32 s{sV+3}, 0x20000")
    A(f"  s_mul_i32 s3, s5, {WS_O_BLK}")
    A(f"  s_mul_i32 s4, s6, {15*131072}")
    A("  s_add_u32 s3, s3, s4")
    A("  s_lshl_b32 s4, s7, 13")
    A("  s_add_u32 s3, s3, s4")
    A(f"  s_add_u32 s{sO}, s42, s3")
    A(f"  s_addc_u32 s{sO+1}, s43, 0")
    A(f"  s_sub_u32 s{sO+2}, {15*131072}, s4")
    A(f"  s_mov_b32 s{sO+3}, 0x20000")
    A(f"  s_lshl_b32 s{sOT}, s{sWAVE}, 19")
    A(f"  s_mov_b32 s{sC}, {CSCALE:#x}")
    A(f"  s_mov_b32 s{sC+1}, {CSCALE:#x}")
    return "\n".join(P)

def QACC(head, qt, nt): return ("v" if head == 0 else "a", 128 + qt * 32 + nt * 4)
def XF(buf, qt, ks): return ("a", buf * 32 + (qt * 2 + ks) * 4)
def WF(nt, ks): return ("a", 64 + (nt & 3) * 8 + ks * 4)

def w_reads(slot, nt):
    r = []
    for ks in range(2):
        for rd in range(2):
            d = WF(nt, ks)
            r.append(ds_read_tr((d[0], d[1] + 2 * rd), aW + nt, slot * 16384 + ks * 8192 + rd * 1024))
    return grp(r, ("w", slot, nt))
def x_reads(buf, nq):
    r = []
    for qt in range(nq):
        for ks in range(2):
            r.append(ds_read_b128(XF(buf, qt, ks), aX + ks, buf * 32768 + qt * 2048))
    return grp(r, ("x", buf))

def dgroup(m0val, base_sreg, soff_add, voffs, srd, tag, n=4, j0=0):
    sal = [salu(f"s_mov_b32 m0, {m0val:#x}", [], [("m0", 0)]),
           salu(f"s_add_u32 s{sSOFF}, s{base_sreg}, {soff_add:#x}", [("s", base_sreg)], [("s", sSOFF)])]
    d = [dma(voffs[j], srd, sSOFF, 1024 * j, tag) for j in range(j0, j0 + n)]
    return sal, d
def groups_W(slot):
    return [dgroup(slot * 16384 + G * 4096, sWB, G * 131072, [dW + j for j in range(4)], sW, f"W{slot}") for G in range(4)]
def groups_X(buf, half):
    g = []
    for G in range(4 * half, 4 * half + 4):
        n = 2 if G == 7 else 4
        g.append(dgroup(65536 + buf * 32768 + G * 4096, sXB, G * 65536, [dX + j for j in range(4)], sX, f"X{buf}", n))
    return g
def groups_K(slot):
    return [dgroup(slot * 16384 + G * 4096, sKV, G * 4096, [dK + j for j in range(4)], sK, f"K{slot}") for G in range(4)]
def groups_V(slot):
    return [dgroup(65536 + slot * 16384 + G * 4096, sKV, G * 4096, [dV + (j & 1) for j in range(4)], sV, f"V{slot}") for G in range(4)]

def interval_dmas(j):
    if j <= 28:
        if j % 2: s = (j + 3) // 2; gx = groups_X(s & 1, 0)
        else:     s = (j + 2) // 2; gx = groups_X(s & 1, 1)
        gw = groups_W((j + 3) & 3)
        n = j + 3
        upd = [s_addi(sWB, sWB, 256 if n % 2 == 0 else 524288 - 256)]
        if j % 2 == 0: upd.append(s_addi(sXB, sXB, 128))
        return gx + gw, upd
    else:
        B = j - 29
        return groups_K(B) + groups_V(B), [s_addi(sKV, sKV, 16384)]

def qinterval(j, nq, dma_on):
    mf = []; blocks = []
    def block(h, nt):
        r = []
        for qt in range(nq):
            for ks in range(2):
                a = QACC(h & 1, qt, nt)
                r.append(mfma(a, WF(nt, ks), XF((h >> 1) & 1, qt, ks), a))
        return r
    bl = []
    if j >= 1: bl += [(j - 1, 5), (j - 1, 6), (j - 1, 7)]
    if j <= 31: bl += [(j, k) for k in range(5)]
    fill = {}
    def put(g, x): fill.setdefault(g, []).append(x)
    need = []
    if dma_on and j <= 31:
        need = [f"W{j&3}"] + ([f"X{(j//2)&1}"] if j % 2 == 0 else [])
    pre = [barrier(vm=need, ds=True)]
    nb = 2 * nq
    if j == 0:
        for nt in range(3): pre += w_reads(0, nt)
        pre += x_reads(0, nq)
    g0 = 0
    if dma_on: groups, upd = interval_dmas(j)
    xr = x_reads((j // 2) & 1, nq) if (j % 2 == 0 and 1 <= j <= 31) else []
    gi = 0
    for bi, (h, nt) in enumerate(bl):
        mf += block(h, nt)
        k = bi if j >= 1 else bi + 3
        if j <= 31:
            rd = w_reads(j & 3, k)
            for q, x in enumerate(rd): put(g0 + q // 2, x)
        if xr and bi < 3:
            n = (len(xr) + 2 - bi) // (3 - bi) if bi < 2 else len(xr)
            n = min(n, len(xr))
            for q in range(n): put(g0 + 2 + q, xr.pop(0))
        if dma_on:
            ng = 1 if j >= 1 and j <= 31 else (2 if (j == 0 and bi < 3) else 1)
            if j == 32: ng = 0
            for u in range(ng):
                if gi < len(groups):
                    sal, d = groups[gi]; gi += 1
                    if ng == 1:
                        for x in sal: put(g0 + 0, x)
                        for q, x in enumerate(d): put(g0 + 2 + q, x)
                    else:
                        b0 = g0 + 3 * u
                        for x in sal: put(b0, x)
                        for q, x in enumerate(d): put(b0 + 1 + q // 2, x)
        g0 += nb
    seq = pre + weave(mf, fill)
    if dma_on:
        if j == 32:
            for sal, d in groups: seq += sal + [nop(0)] + d
        else:
            assert gi == len(groups), (j, gi)
        seq += upd
    return seq

def conv_head(head, nq):
    seq = []
    units = [(qt, ks) for qt in range(nq) for ks in range(4)]
    def unit(n, qt, ks):
        t = T0 + (n & 1) * 12
        f = t + 8
        a = []
        x = QACC(head, qt, 2 * ks); y = QACC(head, qt, 2 * ks + 1)
        if head == 1:
            for r in range(4): a.append(acc_rd(t + r, x[1] + r))
            for r in range(4): a.append(acc_rd(t + 4 + r, y[1] + r))
            src = [t, t + 2, t + 4, t + 6]
        else:
            src = [x[1], x[1] + 2, y[1], y[1] + 2]
        m = [valu(f"v_pk_mul_f32 v[{t+2*k}:{t+2*k+1}], v[{src[k]}:{src[k]+1}], s[{sC}:{sC+1}]",
                  regs("v", src[k], 2), regs("v", t + 2 * k, 2)) for k in range(4)]
        c = [v_cvtpk(f + k, t + 2 * k, t + 2 * k + 1) for k in range(4)]
        def sw(w, p, q): return perm(f"v_permlane{w}_swap_b32 v{p}, v{q}", [("v", p), ("v", q)], [("v", p), ("v", q)])
        s1 = [sw(32, f, f + 2), sw(32, f + 1, f + 3)]
        s2 = [sw(16, f, f + 2), sw(16, f + 1, f + 3)]
        dst = (0 if head == 0 else 64) + qt * 16 + ks * 4
        w = [acc_wr(dst + k, f + k) for k in range(4)]
        return a + m + c, s1, s2, w
    prev = None
    for n, (qt, ks) in enumerate(units):
        amc, s1, s2, w = unit(n, qt, ks)
        seq += amc
        if prev is not None: seq += prev[1]
        else: seq += [nop(1)]
        seq += s1 + [nop(0)] + s2
        prev = (None, w)
    seq += prev[1]
    return seq

def KF(kt, ks): return ("a", 128 + (kt * 4 + ks) * 4)
def VF(dt, hf): return ("a", 192 + (dt * 2 + hf) * 4)
def QF(qt, ks): return ("a", qt * 16 + ks * 4)
def OA(qt, dt): return ("v", OACC + qt * 32 + dt * 4)

def k_reads(slot):
    r = []
    for kt in range(4):
        rr = [ds_read_b128(KF(kt, ks), aK + ks, slot * 16384 + kt * 4096) for ks in range(4)]
        r += grp(rr, ("k", kt))
    return r
def v_reads(slot):
    r = []
    for dt in range(8):
        rr = []
        for hf in range(2):
            for rd in range(2):
                d = VF(dt, hf)
                rr.append(ds_read_tr((d[0], d[1] + 2 * rd), aV + dt, slot * 16384 + hf * 8192 + rd * 4096))
        r += grp(rr, ("v", dt))
    return r
def qk(qt, par):
    r = []
    for kt in range(4):
        for ks in range(4):
            d = ("v", S_[par] + kt * 4)
            r.append(mfma(d, KF(kt, ks), QF(qt, ks), None if ks == 0 else d))
    return r
def pv(qt, par):
    r = []
    for dt in range(8):
        for hf in range(2):
            r.append(mfma(OA(qt, dt), VF(dt, hf), ("v", P_[par] + hf * 4), OA(qt, dt)))
    return r
def sm(qt, par):
    s = S_[par]; p = P_[par]
    E = [v_exp(s + i, s + i) for i in range(16)]
    A = [v_add(L_ + qt, L_ + qt, s + i) for i in range(16)]
    C = [v_cvtpk(p + j, s + 2 * j, s + 2 * j + 1) for j in range(8)]
    return E, A, C

TPL_UNI = []
for j in range(8): TPL_UNI += ["E", "DA", "E", "AC"]
GRP7 = ["E", "E", "AA", "E", "E", "CA", "AC"]
TPL_FRONT = ["DD"] * 4 + GRP7 * 4
TPL_BACK = GRP7 * 4 + ["DD"] * 4
GRP5 = ["E", "AE", "AE", "AE", "CCA"]
TPL_F12 = ["DD"] * 12 + GRP5 * 4
TPL_NOD = GRP7 * 4 + [""] * 4

def fill_step(fill, g0, tpl, smj, dsl):
    E, A, C = (list(x) for x in smj) if smj else ([], [], [])
    for k, s in enumerate(tpl):
        for ch in s:
            src = {"E": E, "A": A, "C": C, "D": dsl}[ch]
            if src: fill.setdefault(g0 + k, []).append(src.pop(0))
    assert not E and not A and not C

def flush_jump(tagname):
    return [salu(f"s_cmp_eq_u32 s{sB}, 15", [("s", sB)], []), I(f"s_cbranch_scc1 {tagname}", "branch"), label(tagname + "_back")]

def cycle4(c, var, last=False):
    nxt = (c + 1) & 3
    pre = []
    if c == 3 and not last:
        pre += [salu(f"s_cmp_eq_u32 s{sB}, 31", [("s", sB)], []), I(f"s_cbranch_scc1 L1{var}_final", "branch")]
    pre.append(barrier(vm=[], ds=True))
    if c == 3: pre += flush_jump(f"L1{var}_flush0")
    kr = k_reads(nxt); vr = v_reads(nxt)
    seq = pre
    tpls = [TPL_UNI, TPL_FRONT, TPL_BACK, TPL_F12]
    for s in range(4):
        t = 1 + s
        mf = qk((s + 3) & 3, t & 1) + pv((1 + s) & 3, t & 1)
        fill = {}
        fill_step(fill, 0, tpls[s], sm((2 + s) & 3, (t + 1) & 1), kr if s < 2 else vr)
        st = weave(mf, fill)
        if c == 3 and s < 3:
            k = max(i for i, x in enumerate(st) if x.kind == "mfma")
            st = st[:k + 1] + flush_jump(f"L1{var}_flush{s+1}") + st[k + 1:]
        seq += st
    assert not kr and not vr
    seq.append(s_addi(sB, sB, 1))
    return seq

def final4(var):
    seq = [label(f"L1{var}_final")]
    def call(k): return [I(f"s_branch L1{var}_flush{k}", "branch"), label(f"L1{var}_flush{k}_fin")]
    seq += call(0)
    fill = {}; fill_step(fill, 0, TPL_UNI, sm(2, 0), [])
    seq += weave(qk(3, 1) + pv(1, 1), fill)
    seq += call(1)
    fill = {};
    E, A, C = sm(3, 1)
    fill_step(fill, 0, ["EE"] * 4 + ["AEE", "AEE", "AEE", "AEE"] + ["AAC"] * 4 + ["AC"] * 4, (E, A, C), [])
    seq += weave(pv(2, 0), fill)
    seq += call(2)
    seq += weave(pv(3, 1), {})
    seq += call(3)
    return seq

def cycle3(c, var):
    nxt = (c + 1) & 3
    pre = []
    if c == 3:
        pre += [salu(f"s_cmp_eq_u32 s{sB}, 31", [("s", sB)], []), I(f"s_cbranch_scc1 L1{var}_final", "branch")]
    pre.append(barrier(vm=[f"K{nxt}", f"V{nxt}"], ds=True))
    F0 = 6
    vcur = v_reads(c)[2 * F0:]
    vnx = v_reads(nxt)[:2 * F0]
    kr = k_reads(nxt)
    gK = groups_K(c); gV = groups_V(c)
    mf = []; fill = {}
    for s in range(3):
        par = (c + s) & 1
        mf += qk((s + 2) % 3, par) + pv(s, par)
        fill_step(fill, 32 * s, [x.replace("D", "") for x in TPL_UNI], sm((s + 1) % 3, par ^ 1), [])
    def put(g, x): fill.setdefault(g, []).append(x)
    for k, x in enumerate(vcur): put(k if k < 20 else 19, x)
    for i, x in enumerate(kr): put(20 + i if i < 8 else 28 + (i - 8) * 1, x)
    for k, x in enumerate(vnx): put(84 + k, x)
    g = 37
    for sal, d in gK:
        for x in sal: put(g, x)
        for q, x in enumerate(d): put(g + 1 + q, x)
        g += 6
    first = True
    for sal, d in gV:
        for x in sal: put(g, x)
        for q, x in enumerate(d): put(g + 1 + q, x)
        g += 6
    put(95, s_addi(sKV, sKV, 16384))
    seq = []
    st = weave(mf, fill)
    if c == 3:
        idx = [i for i, x in enumerate(st) if x.kind == "mfma"]
        out = []; last = 0
        for s in range(3):
            k = idx[32 * s + 31]
            out += st[last:k + 1] + flush_jump(f"L1{var}_flush{s}")
            last = k + 1
        out += st[last:]
        st = out
    seq = pre + st
    seq.append(s_addi(sB, sB, 1))
    return seq

def final3(var):
    seq = [label(f"L1{var}_final")]
    def call(k): return [I(f"s_branch L1{var}_flush{k}", "branch"), label(f"L1{var}_flush{k}_fin")]
    F0 = 6
    vcur = v_reads(3)[2 * F0:]
    fill = {}
    fill_step(fill, 0, [x.replace("D", "") for x in TPL_UNI], sm(1, 0), [])
    for k, x in enumerate(vcur): fill.setdefault(k if k < 20 else 19, []).append(x)
    seq += weave(qk(2, 1) + pv(0, 1), fill)
    seq += call(0)
    fill = {}
    fill_step(fill, 0, ["EE"] * 4 + ["AEE", "AEE", "AEE", "AEE"] + ["AAC"] * 4 + ["AC"] * 4, sm(2, 1), [])
    seq += weave(pv(1, 0), fill)
    seq += call(1)
    seq += weave(pv(2, 1), {})
    seq += call(2)
    return seq

LO_BITS = 0x30800000
HI_BITS = 0x4b800000
def flush_block(var, qt):
    nm = f"L1{var}_flush{qt}"
    l = L_ + qt; t = T0; f = T0 + 8
    def sw(w, p, q): return perm(f"v_permlane{w}_swap_b32 v{p}, v{q}", [("v", p), ("v", q)], [("v", p), ("v", q)])
    s = [label(nm), nop(7)]
    for w in (32, 16):
        s += [valu(f"v_mov_b32 v{t}, v{l}", [("v", l)], [("v", t)]), nop(1), sw(w, l, t), v_add(l, l, t)]
    s += [valu(f"v_cmp_nle_f32 vcc, {LO_BITS:#x}, v{l}", [("v", l)], [("vcc", 0)]), nop(1),
          salu("s_mov_b64 s[34:35], vcc"),
          valu(f"v_cmp_nge_f32 vcc, {HI_BITS:#x}, v{l}", [("v", l)], [("vcc", 0)]), nop(1),
          salu("s_or_b64 s[34:35], s[34:35], vcc"),
          I(f"s_cbranch_scc1 {nm}_slow", "branch"),
          trans(f"v_rcp_f32 v{l}, v{l}", [("v", l)], [("v", l)]),
          salu(f"s_lshr_b32 s{sTMP}, s{sB}, 4"), salu(f"s_lshl_b32 s{sTMP}, s{sTMP}, 12"),
          salu(f"s_add_u32 s{sTMP}, s{sTMP}, s{sOT}"), salu(f"s_add_u32 s{sTMP}, s{sTMP}, {qt*131072}")]
    for i in range(4):
        x = OA(qt, 2 * i)[1]
        for k in range(4):
            s.append(valu(f"v_pk_mul_f32 v[{t+2*k}:{t+2*k+1}], v[{x+2*k}:{x+2*k+1}], v[{l}:{l+1}] op_sel_hi:[1,0]" if l % 2 == 0 else
                          f"v_pk_mul_f32 v[{t+2*k}:{t+2*k+1}], v[{x+2*k}:{x+2*k+1}], v[{l-1}:{l}] op_sel:[0,1] op_sel_hi:[1,1]",
                          regs("v", x + 2 * k, 2) + [("v", l)], regs("v", t + 2 * k, 2)))
        ff = f + 4 * i
        for k in range(4): s.append(v_cvtpk(ff + k, t + 2 * k, t + 2 * k + 1))
        s.append(vstore(("v", ff), 4, vLANE16, sO, sTMP, i * 1024))
    s.append(label(nm + "_done"))
    for r in range(0, 32, 2):
        x = OACC + qt * 32 + r
        s.append(valu(f"v_mov_b64 v[{x}:{x+1}], 0", [], regs("v", x, 2)))
    s.append(valu(f"v_mov_b32 v{l}, 0", [], [("v", l)]))
    for k in range(16): s.append(acc_mov(qt * 16 + k, 64 + qt * 16 + k))
    s += [nop(1), salu(f"s_cmp_eq_u32 s{sB}, 15"), I(f"s_cbranch_scc1 {nm}_back", "branch"), I(f"s_branch {nm}_fin", "branch")]
    s += [label(nm + "_slow"), I(f"s_branch {nm}_done", "branch")]
    return s

def att_prologue(nq, dma_on):
    seq = [barrier(vm=["K0", "V0"] if dma_on else [], ds=True)]
    seq += k_reads(0) + v_reads(0)
    return seq

def kernel1():
    txt = [setup_text()]
    txt.append(f"  s_cmp_eq_u32 s{sWAVE}, 3\n  s_cbranch_scc1 L1b_start")
    for var, nq, dma_on in (("a", 4, False), ("b", 3, True)):
        nm = f"k1{var}"
        if var == "b": txt.append("L1b_start:")
        pro = []
        if dma_on:
            pro += [salu(f"s_mov_b32 s{sWB}, 0"), salu(f"s_mov_b32 s{sXB}, 0"), salu(f"s_mov_b32 s{sKV}, 0")]
            for j in (-3, -2, -1):
                groups, upd = interval_dmas(j)
                for sal, d in groups: pro += sal + [nop(0)] + d
                pro += upd
        for r in range(128, 256, 2): pro.append(valu(f"v_mov_b64 v[{r}:{r+1}], 0", [], regs("v", r, 2)))
        for r in range(128, 256): pro.append(valu(f"v_accvgpr_write_b32 a{r}, 0", [], [("a", r)]))
        pro += qinterval(0, nq, dma_on)
        body = []
        for j in range(1, 5): body += qinterval(j, nq, dma_on)
        post = []
        for j in range(29, 33): post += qinterval(j, nq, dma_on)
        post.append(nop(7))
        post += conv_head(1, nq)
        ap = att_prologue(nq, dma_on)
        post += ap
        post += conv_head(0, nq)
        for r in range(128, 256, 2): post.append(valu(f"v_mov_b64 v[{r}:{r+1}], 0", [], regs("v", r, 2)))
        for q in range(4): post.append(valu(f"v_mov_b32 v{L_+q}, 0", [], [("v", L_ + q)]))
        post.append(salu(f"s_mov_b32 s{sB}, 0", [], [("s", sB)]))
        post.append(nop(1))
        post += qk(0, 0) + qk(1, 1)
        E, A, C = sm(0, 0)
        post += E + [nop(0)] + A + C
        if nq == 4:
            fill = {}; fill_step(fill, 0, TPL_UNI, sm(1, 1), [])
            post += weave(qk(2, 0) + pv(0, 0), fill)
        cyc = [(cycle4(c, var) if nq == 4 else cycle3(c, var)) for c in range(4)]
        fin = final4(var) if nq == 4 else final3(var)
        def cp(l): return [copy.copy(x) for x in l]
        lin = cp(pro) + [mark("qb1")] + cp(body) + [mark("qb2")] + cp(body) + [mark("qb3")] + cp(body) + [mark("post")] + cp(post)
        for rep in range(3):
            for c in range(4): lin += [mark(f"r{rep}c{c}")] + cp(cyc[c])
        for c in range(3): lin += [mark(f"r3c{c}")] + cp(cyc[c])
        lin += [mark("fin")] + cp(fin) + [mark("end")]
        out, _, _ = insert_waits(lin)
        idx = {x.tag[1]: k for k, x in enumerate(out) if x.kind == "label" and isinstance(x.tag, tuple)}
        def seg(a, b): return out[idx[a] + 1: idx[b]]
        T = lambda l: [x.text for x in l]
        p = out[:idx["qb1"]]; qb = seg("qb2", "qb3")
        assert T(qb) == T(seg("qb3", "post")), "qproj loop not steady"
        q = seg("post", "r0c0")
        names = [f"r{r}c{c}" for r in range(3) for c in range(4)] + ["r3c0", "r3c1", "r3c2", "fin"]
        segs = {n: seg(n, names[i + 1]) for i, n in enumerate(names[:-1])}
        for c in range(4):
            assert T(segs[f"r1c{c}"]) == T(segs[f"r2c{c}"]), f"attn loop not steady c{c}"
            if c < 3: assert T(segs[f"r1c{c}"]) == T(segs[f"r3c{c}"])
        ab = [segs[f"r1c{c}"] for c in range(4)]
        fo = seg("fin", "end")
        loop = ab[0] + ab[1] + ab[2] + ab[3]
        errs = []
        for n in (1, 2, 7):
            for m in (0, 1, 2):
                errs += verify_waits(p + qb * n + q + loop * m + ab[0] + ab[1] + ab[2] + fo, f"{nm} n{n} m{m}")
        errs += check_hazards(p + qb + qb + q + loop + loop + ab[0] + ab[1] + ab[2] + fo, nm)
        fl = []
        for qt in range(nq): fl += flush_block(var, qt)
        errs += check_hazards(fl, nm + "flush")
        if errs:
            for e in errs[:30]: print(e)
            raise RuntimeError(f"{nm}: {len(errs)} errors")
        txt.append(emit(p))
        txt.append(f"  s_mov_b32 s30, 7\nL1{var}_qloop:")
        txt.append(emit(qb))
        txt.append(f"  s_sub_u32 s30, s30, 1\n  s_cmp_lg_u32 s30, 0\n  s_cbranch_scc1 L1{var}_qloop")
        txt.append(emit(q))
        txt.append(f"L1{var}_aloop:")
        txt.append(emit(loop))
        txt.append(f"  s_branch L1{var}_aloop")
        txt.append(emit(fo))
        txt.append("  s_endpgm")
        txt.append(emit(fl))
    txt.append("L1_end:\n  s_endpgm")
    kd = f""".amdhsa_kernel {NAME}
  .amdhsa_next_free_vgpr 512
  .amdhsa_next_free_sgpr 64
  .amdhsa_accum_offset 256
  .amdhsa_group_segment_fixed_size 0
  .amdhsa_kernarg_size 104
  .amdhsa_user_sgpr_count 2
  .amdhsa_user_sgpr_kernarg_segment_ptr 1
  .amdhsa_system_sgpr_workgroup_id_x 1
.end_amdhsa_kernel"""
    launch = f"; @launch kernel={NAME} grid=(256,1,1) block=(256,1,1) lds=131072"
    return launch, "\n".join(txt), kd

if __name__ == "__main__":
    l, t, k = kernel1()
    print(l); print(t); print(k)
```

```python
from ir import *

NAME = "oproj_kernel"
WS_O_BLK = 120 * 128 * 1024

def S(t): return salu(t)
def V(t): return valu(t)

def kernel2():
    P = []
    A = P.append
    A(f".p2align 8\n.globl {NAME}\n.type {NAME},@function\n{NAME}:")
    A("  s_cmp_ge_u32 s2, 256")
    A("  s_cbranch_scc1 L2_end")
    A("  s_and_b32 s3, s2, 7")
    A("  s_lshr_b32 s4, s2, 3")
    A("  s_lshr_b32 s5, s3, 2")
    A("  s_and_b32 s6, s3, 1")
    A("  s_lshl_b32 s6, s6, 2")
    A("  s_and_b32 s7, s4, 3")
    A("  s_add_u32 s6, s6, s7")
    A("  s_lshr_b32 s7, s3, 1")
    A("  s_and_b32 s7, s7, 1")
    A("  s_lshl_b32 s7, s7, 3")
    A("  s_lshr_b32 s4, s4, 2")
    A("  s_add_u32 s7, s7, s4")
    A("  s_cmp_ge_u32 s7, 15")
    A("  s_cbranch_scc1 L2_end")
    A("  s_mul_i32 s4, s5, 40")
    A("  s_add_u32 s28, s0, s4")
    A("  s_addc_u32 s29, s1, 0")
    A("  s_load_dwordx2 s[30:31], s[28:29], 32")
    A("  s_load_dwordx2 s[32:33], s[0:1], 80")
    A("  s_load_dwordx2 s[34:35], s[0:1], 96")
    A("  v_and_b32 v1, 63, v0")
    A("  v_lshrrev_b32 v2, 6, v0")
    A("  v_and_b32 v3, 15, v1")
    A("  v_lshrrev_b32 v4, 4, v1")
    A("  v_readfirstlane_b32 s36, v2")
    A("  v_lshrrev_b32 v5, 2, v3")
    A("  v_and_b32 v6, 1, v4")
    A("  v_lshl_add_u32 v6, v6, 2, v5")
    A("  v_lshl_add_u32 v5, v4, 2, v5")
    A("  v_lshlrev_b32 v5, 8, v5")
    A("  v_and_b32 v7, 3, v3")
    A("  v_lshl_add_u32 v5, v7, 3, v5")
    for nt in range(8):
        A(f"  v_xor_b32 v7, {nt}, v6")
        A(f"  v_lshl_add_u32 v{8+nt}, v7, 5, v5")
        A(f"  v_add_u32 v{16+nt}, 0x10000, v{8+nt}")
    A("  s_lshl_b32 s37, s36, 16")
    for j in range(4):
        A(f"  v_add_u32 v5, {4*(j&1)}, v4")
        A(f"  v_lshlrev_b32 v5, 1, v5")
        A(f"  v_xor_b32 v5, v5, v3")
        A(f"  v_lshlrev_b32 v5, 4, v5")
        A(f"  v_lshl_add_u32 v5, v4, 11, v5")
        A(f"  v_add_u32 v5, {4*j*2048 - 1024*j}, v5")
        A(f"  v_add_u32 v{24+j}, s37, v5")
    A("  s_lshl_b32 s38, s36, 18")
    A("  v_lshlrev_b32 v5, 4, v1")
    A("  v_add_u32 v28, s38, v5")
    A("  v_add_u32 v29, 0x20000, v28")
    A("  s_lshl_b32 s39, s36, 17")
    A("  v_lshlrev_b32 v5, 12, v3")
    A("  v_lshl_add_u32 v5, v4, 4, v5")
    A("  v_add_u32 v30, s39, v5")
    A("  s_waitcnt lgkmcnt(0)")
    A("  s_lshl_b32 s4, s6, 8")
    A("  s_add_u32 s8, s30, s4")
    A("  s_addc_u32 s9, s31, 0")
    A("  s_sub_u32 s10, 0x800000, s4")
    A("  s_mov_b32 s11, 0x20000")
    A(f"  s_mul_i32 s4, s5, {WS_O_BLK}")
    A("  s_lshl_b32 s3, s7, 20")
    A("  s_add_u32 s4, s4, s3")
    A("  s_add_u32 s12, s34, s4")
    A("  s_addc_u32 s13, s35, 0")
    A("  s_mov_b32 s14, 0x100000")
    A("  s_mov_b32 s15, 0x20000")
    A("  s_lshl_b32 s4, s7, 19")
    A("  s_lshl_b32 s3, s5, 11")
    A("  s_add_u32 s4, s4, s3")
    A("  s_lshl_b32 s3, s6, 8")
    A("  s_add_u32 s4, s4, s3")
    A("  s_add_u32 s16, s32, s4")
    A("  s_addc_u32 s17, s33, 0")
    A(f"  s_sub_u32 s18, {1920*4096}, s4")
    A("  s_mov_b32 s19, 0x20000")
    A("  s_lshl_b32 s20, s36, 13")
    A("  s_mov_b32 s21, 0")
    A("  s_mov_b32 s22, 0")
    A("  s_mov_b32 s23, 0x8000")
    for r in range(64, 128, 2):
        A(f"  v_mov_b64 v[{r}:{r+1}], 0")
    pro_text = "\n".join(P)

    ACC = lambda mt, nt: ("v", 64 + (mt * 8 + nt) * 4)
    AF = lambda buf, ks: ("a", buf * 16 + ks * 4)
    OF = lambda buf, mt, ks: ("a", 64 + buf * 32 + (mt * 4 + ks) * 4)

    def a_reads(slot, nt):
        base = (8 if slot < 2 else 16) + nt
        r = []
        for ks in range(4):
            for rd in range(2):
                d = AF(nt & 3, ks)
                r.append(ds_read_tr((d[0], d[1] + 2 * rd), base, (slot & 1) * 32768 + ks * 8192 + rd * 4096))
        return grp(r, ("a", slot, nt))
    def w_dma(slot, tag):
        r = []
        for G in range(2):
            r.append(salu(f"s_add_u32 m0, s20, {slot*32768 + G*4096}", [("s", 20)], [("m0", 0)]))
            for j in range(4):
                r.append(dma(24 + j, 8, 22 + G, 1024 * j, tag))
        r.append(salu("s_add_u32 s22, s22, 0x40000", [("s", 22)], [("s", 22)]))
        r.append(salu("s_add_u32 s23, s23, 0x40000", [("s", 23)], [("s", 23)]))
        return r
    def o_loads(buf):
        r = []
        for ks in range(4):
            for mt in range(2):
                r.append(vload(OF(buf, mt, ks), 4, 28 + mt, 12, 21, ks * 1024))
        grp(r, ("o", buf))
        r.append(salu("s_add_u32 s21, s21, 0x1000", [("s", 21)], [("s", 21)]))
        return r

    def stage(t, do_o, do_w, has_next):
        slot = t & 3
        mf = []
        for nt in range(8):
            for mt in range(2):
                for ks in range(4):
                    mf.append(mfma(ACC(mt, nt), AF(nt & 3, ks), OF(slot, mt, ks), ACC(mt, nt)))
        fill = {}
        def put(g, x): fill.setdefault(g, []).append(x)
        BAR = 44
        for nt in range(5):
            for k, x in enumerate(a_reads(slot, nt + 3)): put(nt * 8 + k, x)
        if has_next:
            put(BAR, barrier(vm=[f"w{(t+1)&3}"], ds=True))
            rd = []
            for nt in range(3): rd += a_reads((slot + 1) & 3, nt)
            pos = [44,44,45,45,46,46,47,47, 48,49,50,51,52,53,54,55, 56,57,58,59,60,61,62,63]
            for g, x in zip(pos, rd): put(g, x)
        if do_o:
            lo = o_loads((t + 3) & 3)
            for k, x in enumerate(lo[:8]): put(1 + 4 * k, x)
            put(34, lo[8])
        if do_w:
            wd = w_dma(slot, f"w{slot}")
            put(47, wd[0])
            for k in range(4): put(48 + 2 * k, wd[1 + k])
            put(55, wd[5])
            for k in range(4): put(56 + 2 * k, wd[6 + k])
            put(63, wd[10]); put(63, wd[11])
        return weave(mf, fill)

    pro = []
    for s in range(4):
        pro += w_dma(s, f"w{s}")
        if s < 3: pro += o_loads(s)
    pro2 = []
    for x in pro:
        pro2.append(x)
        if x.kind == "salu" and ("m0", 0) in x.wr: pro2.append(nop(0))
    pro = pro2
    pro.append(barrier(vm=["w0"], ds=False))
    for nt in range(3): pro += a_reads(0, nt)
    body = []
    for t in range(4): body += stage(t, True, True, True)
    post = []
    post += stage(28, True, False, True)
    post += stage(29, False, False, True)
    post += stage(30, False, False, True)
    post += stage(31, False, False, False)
    post.append(nop(7))
    T = 32
    k = 0
    ep = []
    for mt in range(2):
        for i in range(4):
            f = T + (k & 3) * 4; k += 1
            x = ACC(mt, 2 * i)[1]; y = ACC(mt, 2 * i + 1)[1]
            ep.append([v_cvtpk(f, x, x + 1), v_cvtpk(f + 1, x + 2, x + 3), v_cvtpk(f + 2, y, y + 1), v_cvtpk(f + 3, y + 2, y + 3)])
            ep.append([nop(0), perm(f"v_permlane32_swap_b32 v{f}, v{f+2}", [("v", f), ("v", f + 2)], [("v", f), ("v", f + 2)]),
                       perm(f"v_permlane32_swap_b32 v{f+1}, v{f+3}", [("v", f + 1), ("v", f + 3)], [("v", f + 1), ("v", f + 3)]),
                       nop(0),
                       perm(f"v_permlane16_swap_b32 v{f}, v{f+2}", [("v", f), ("v", f + 2)], [("v", f), ("v", f + 2)]),
                       perm(f"v_permlane16_swap_b32 v{f+1}, v{f+3}", [("v", f + 1), ("v", f + 3)], [("v", f + 1), ("v", f + 3)]),
                       vstore(("v", f), 4, 30, 16, 24 + mt, i * 64)])
    for e in ep: post += e
    p, b, q = build_loop(pro, body, post, "k2")
    txt = [pro_text]
    txt.append("  s_mov_b32 s24, 0\n  s_mov_b32 s25, 0x10000")
    txt.append(emit(p))
    txt.append("  s_mov_b32 s26, 7\nL2_loop:")
    txt.append(emit(b))
    txt.append("  s_sub_u32 s26, s26, 1\n  s_cmp_lg_u32 s26, 0\n  s_cbranch_scc1 L2_loop")
    txt.append(emit(q))
    txt.append("L2_end:\n  s_endpgm")
    kd = f""".amdhsa_kernel {NAME}
  .amdhsa_next_free_vgpr 320
  .amdhsa_next_free_sgpr 64
  .amdhsa_accum_offset 128
  .amdhsa_group_segment_fixed_size 0
  .amdhsa_kernarg_size 104
  .amdhsa_user_sgpr_count 2
  .amdhsa_user_sgpr_kernarg_segment_ptr 1
  .amdhsa_system_sgpr_workgroup_id_x 1
.end_amdhsa_kernel"""
    launch = f"; @launch kernel={NAME} grid=(256,1,1) block=(256,1,1) lds=131072"
    return launch, "\n".join(txt), kd

if __name__ == "__main__":
    l, t, k = kernel2()
    print(l); print(t); print(k)
```

```python
import sys, re
sys.path.insert(0,'gen'); sys.path.insert(0,'mb')
from asmlib import assemble
import k2
KN="concat_heads__mha_block_cached__gqa_block_cached__near_ridge"
hdr=open(f'cdna_kernels/{KN}.s.ref').read().split('; Override')[0]
def build(parts, fname):
    txt=hdr
    txt+="".join(p[0]+"\n" for p in parts)
    txt+='.amdgcn_target "amdgcn-amd-amdhsa--gfx950"\n.text\n'
    txt+="\n".join(p[1] for p in parts)+"\n"
    txt+='.section .rodata,"a"\n'+"\n".join(".p2align 6\n"+p[2] for p in parts)+"\n"
    open(fname,"w").write(txt)
    assemble(txt, fname.replace(".s",".co"), 13, KN+"_kernel")
    L=[]
    for p in parts:
        m=re.search(r"kernel=(\S+) grid=\((\d+),.*lds=(\d+)", p[0]); L.append(f"{m.group(1)} {m.group(2)} {m.group(3)}")
    open(fname.replace(".s",".launch"),"w").write("\n".join(L)+"\n")
    print(fname, len(txt), "bytes")
if __name__=="__main__":
    which=sys.argv[1] if len(sys.argv)>1 else "k2"
    if which=="k2":
        build([k2.kernel2()], "out_k2.s")
    else:
        import k1
        build([k1.kernel1(), k2.kernel2()], "out_full.s")
```
